```python
import torch

def _softmax(x, axis=-1):
    return torch.softmax(x, dim=axis)
def _gelu(x):
    return torch.nn.functional.gelu(x, approximate="tanh")
def _silu(x):
    return torch.nn.functional.silu(x)
def _sigmoid(x):
    return torch.sigmoid(x)
def _layernorm(x, axis=-1, eps=1e-5):
    m = x.mean(dim=axis, keepdim=True)
    v = x.var(dim=axis, keepdim=True, unbiased=False)
    return (x - m) / torch.sqrt(v + eps)
def _scatter_add(tgt, idx, src, axis=0):
    return tgt.clone().index_add_(axis, idx, src)
def _segment_sum(src, seg, n):
    out = torch.zeros((n,) + src.shape[1:], dtype=src.dtype)
    return out.index_add_(0, seg, src)
def _pad(x, pw):
    flat = tuple(v for pair in reversed(pw) for v in pair)
    return torch.nn.functional.pad(x, flat)

kernel_name = 'gated_mix__compressed_kv_cla__glu_gated_reglu__decode'

def setup_inputs():

    _w = (lambda a: (lambda t: t.to(torch.bfloat16) if t.is_floating_point() else t)(torch.as_tensor(a)))
    def _A_setup():
        B, H, Sq, Sk, D, M = 4, 32, 1, 4096, 128, 512
        Dc = 4 * D
        return {
            "x": _w((lambda *s: torch.randn(*s, dtype=torch.bfloat16) * 0.05)(B, Sq, M)),
            "c_kv": _w((lambda *s: torch.randn(*s, dtype=torch.bfloat16) * 0.4)(B, Sk, Dc)),
            "w_q": _w((lambda *s: torch.randn(*s, dtype=torch.bfloat16) * 6.4)(M, H, D) * (M ** -0.5)),
            "w_uk": _w((lambda *s: torch.randn(*s, dtype=torch.bfloat16) * 6.4)(Dc, H, D) * (Dc ** -0.5)),
            "w_uv": _w((lambda *s: torch.randn(*s, dtype=torch.bfloat16) * 0.4)(Dc, H, D) * (Dc ** -0.5)),
            "w_o": _w((lambda *s: torch.randn(*s, dtype=torch.bfloat16) * 0.4)(H, D, M) * ((H * D) ** -0.5)),
        }
    _A_in = _A_setup()

    def _B_setup():
        B, S, D, F = 4, 1, 512, 1792
        return {
            "x": _w((lambda *s: torch.randn(*s, dtype=torch.bfloat16) * 0.05)(B, S, D)),
            "W_gate": _w((lambda *s: torch.randn(*s, dtype=torch.bfloat16) * 0.8)(D, F) * (2.0 / D) ** 0.5),
            "W_up": _w((lambda *s: torch.randn(*s, dtype=torch.bfloat16) * 0.8)(D, F) * (2.0 / D) ** 0.5),
            "W_down": _w((lambda *s: torch.randn(*s, dtype=torch.bfloat16) * 0.8)(F, D) * (1.0 / F) ** 0.5),
        }
    _B_in = _B_setup()

    return {
        "A_x": _A_in["x"],
        "A_c_kv": _A_in["c_kv"],
        "A_w_q": _A_in["w_q"],
        "A_w_uk": _A_in["w_uk"],
        "A_w_uv": _A_in["w_uv"],
        "A_w_o": _A_in["w_o"],
        "B_x": _B_in["x"],
        "B_W_gate": _B_in["W_gate"],
        "B_W_up": _B_in["W_up"],
        "B_W_down": _B_in["W_down"],
        "gate_w": _w((lambda *s: torch.randn(*s, dtype=torch.bfloat16) * 0.05)(512) * 16.0),
    }

def reference(A_x, A_c_kv, A_w_q, A_w_uk, A_w_uv, A_w_o, B_x, B_W_gate, B_W_up, B_W_down, gate_w):
    def _A_ref(x, c_kv, w_q, w_uk, w_uv, w_o):
        B, Sq, M = x.shape[0], x.shape[1], x.shape[2]
        Sk = c_kv.shape[1]
        H, D = w_q.shape[1], w_q.shape[2]
        q = torch.einsum("bqm,mhd->bhqd", x, w_q)
        k = torch.einsum("bkc,chd->bhkd", c_kv, w_uk)
        v = torch.einsum("bkc,chd->bhkd", c_kv, w_uv)
        scores = torch.einsum("bhqd,bhkd->bhqk", q, k) * (D ** -0.5)
        off = Sk - Sq
        qi = torch.arange(Sq)[:, None]
        kj = torch.arange(Sk)[None, :]
        cmask = kj <= (qi + off)
        scores = torch.where(cmask[None, None], scores, -1e9)
        p = _softmax(scores, axis=-1)
        ctx = torch.einsum("bhqk,bhkd->bhqd", p, v)
        return torch.einsum("bhqd,hdm->bqm", ctx, w_o)

    def _B_ref(x, W_gate, W_up, W_down):
        gate = torch.einsum("bsd,df->bsf", x, W_gate)
        up = torch.einsum("bsd,df->bsf", x, W_up)
        gate = gate * (lambda x, dt: x.to(dt))(gate > 0, gate.dtype)
        h = gate * up
        return torch.einsum("bsf,fd->bsd", h, W_down)

    x = A_x
    g = _sigmoid((x * gate_w).sum(-1, keepdims=True))
    a = _A_ref(x, A_c_kv, A_w_q, A_w_uk, A_w_uv, A_w_o)
    b = _B_ref(x, B_W_gate, B_W_up, B_W_down)
    return g * a + (1 - g) * b
```

```python
NAME = "gated_mix__compressed_kv_cla__glu_gated_reglu__decode"
WS_QABS = 0x0
WS_HFFN = 0x20000
WS_ML   = 0x28000
WS_CTXP = 0x100000
WS_OPART= 0x1000000
WS_SIZE = 0x1400000
out = []
def E(s): out.append("    " + s)
def L(s): out.append(s + ":")
def srd(d, lo, nbytes):
    E(f"s_mov_b32 s{d}, s{lo}"); E(f"s_and_b32 s{d+1}, s{lo+1}, 0xffff")
    E(f"s_mov_b32 s{d+2}, {nbytes}"); E(f"s_mov_b32 s{d+3}, 0x00020000")
def srd_off(d, lo, off, nbytes):
    E(f"s_add_u32 s{d}, s{lo}, {off}"); E(f"s_addc_u32 s{d+1}, s{lo+1}, 0"); E(f"s_and_b32 s{d+1}, s{d+1}, 0xffff")
    E(f"s_mov_b32 s{d+2}, {nbytes}"); E(f"s_mov_b32 s{d+3}, 0x00020000")
def head(k):
    out.append(f".globl {k}\n.p2align 8\n.type {k},@function\n{k}:")
def kd(k, v, s=96):
    acc = (v + 3)//4*4
    return (f".amdhsa_kernel {k}\n  .amdhsa_next_free_vgpr {v}\n  .amdhsa_next_free_sgpr {s}\n  .amdhsa_accum_offset {acc}\n"
            "  .amdhsa_group_segment_fixed_size 0\n  .amdhsa_kernarg_size 112\n  .amdhsa_user_sgpr_count 2\n"
            "  .amdhsa_user_sgpr_kernarg_segment_ptr 1\n  .amdhsa_system_sgpr_workgroup_id_x 1\n.end_amdhsa_kernel\n")
def zero(regs):
    for r in regs: E(f"v_mov_b32 v{r}, 0")
def lane_decomp():
    E("v_and_b32 v1, 63, v0"); E("v_lshrrev_b32 v2, 6, v0"); E("v_lshrrev_b32 v3, 4, v1")
    E("v_and_b32 v4, 15, v1"); E("v_lshrrev_b32 v5, 2, v4"); E("v_and_b32 v6, 3, v4")
    E("v_readfirstlane_b32 s20, v2")

K1 = "k1_prep_kernel"
def gen_k1():
    head(K1)
    E("s_cmp_ge_u32 s2, 156"); E("s_cbranch_scc1 K1_done")
    E("s_load_dwordx2 s[4:5], s[0:1], 0")
    E("s_load_dwordx2 s[6:7], s[0:1], 16")
    E("s_load_dwordx2 s[8:9], s[0:1], 24")
    E("s_load_dwordx2 s[10:11], s[0:1], 56")
    E("s_load_dwordx2 s[12:13], s[0:1], 64")
    E("s_load_dwordx2 s[14:15], s[0:1], 104")
    lane_decomp()
    E("s_waitcnt lgkmcnt(0)")
    srd(24, 4, 4096)
    srd(28, 6, 4194304)
    srd(32, 8, 4194304)
    srd(36, 10, 1835008)
    srd(40, 12, 1835008)
    srd(44, 14, WS_SIZE)
    E("v_lshlrev_b32 v7, 10, v4"); E("v_lshl_add_u32 v7, v3, 4, v7")
    for ks in range(16):
        E(f"buffer_load_dwordx4 v[{64+4*ks}:{67+4*ks}], v7, s[24:27], 0 offen offset:{ks*64}")
    E("s_cmp_ge_u32 s2, 128"); E("s_cbranch_scc1 K1_ffn")
    E("s_and_b32 s21, s2, 31")
    E("s_lshr_b32 s22, s2, 5")
    E("s_lshl_b32 s23, s22, 7"); E("s_lshl_b32 s3, s20, 5"); E("s_add_u32 s23, s23, s3")
    E("v_add_u32 v8, s23, v4"); E("v_lshlrev_b32 v8, 13, v8"); E("v_lshl_add_u32 v8, v3, 4, v8")
    E("s_lshl_b32 s3, s21, 8")
    for t in range(2):
        for ks in range(4):
            E(f"buffer_load_dwordx4 v[{128+16*t+4*ks}:{131+16*t+4*ks}], v8, s[32:35], s3 offen offset:{ks*64}")
        if t == 0: E("v_add_u32 v8, 0x20000, v8")
    for par in range(2):
        E(f"v_lshlrev_b32 v9, 1, v3")
        if par: E("v_or_b32 v9, 8, v9")
        E("v_xor_b32 v9, v9, v4"); E(f"v_lshlrev_b32 v{10+par}, 4, v9"); E(f"v_lshl_add_u32 v{10+par}, v3, 13, v{10+par}")
    E("s_lshl_b32 s16, s20, 20"); E("s_add_u32 s16, s16, s3")
    E("s_lshl_b32 s17, s20, 15")
    for t in range(32):
        E(f"s_add_u32 m0, s17, {t*1024}")
        E(f"s_add_u32 s18, s16, {t*32768}")
        E(f"buffer_load_dwordx4 v{10+((t>>1)&1)}, s[28:31], s18 offen lds")
    E("v_and_b32 v9, 1, v3"); E("v_lshl_add_u32 v9, v9, 2, v5"); E("v_lshlrev_b32 v9, 1, v9")
    E("v_lshl_add_u32 v12, v3, 3, v5"); E("v_lshlrev_b32 v12, 8, v12")
    E("v_and_b32 v13, 1, v6"); E("v_lshl_add_u32 v12, v13, 3, v12")
    E("v_lshrrev_b32 v13, 1, v6"); E("v_lshl_add_u32 v12, v13, 4, v12")
    E("s_lshl_b32 s3, s20, 2")
    for t in range(2):
        E(f"v_mov_b32 v13, s3"); E(f"v_add_u32 v13, {2*t}, v13"); E("v_xor_b32 v13, v13, v9")
        E(f"v_lshl_add_u32 v{14+2*t}, v13, 4, v12"); E(f"v_add_u32 v{15+2*t}, 0x10000, v{14+2*t}")
    zero(range(32, 40))
    E("s_waitcnt vmcnt(0)"); E("s_barrier")
    for ks in range(16):
        for t in range(2):
            b = 14+2*t + (ks >> 3); off = (ks & 7)*8192
            E(f"ds_read_b64_tr_b16 v[{160+4*t}:{161+4*t}], v{b} offset:{off}")
            E(f"ds_read_b64_tr_b16 v[{162+4*t}:{163+4*t}], v{b} offset:{off+1024}")
        E("s_waitcnt lgkmcnt(0)")
        for t in range(2):
            E(f"v_mfma_f32_16x16x32_bf16 v[{32+4*t}:{35+4*t}], v[{64+4*ks}:{67+4*ks}], v[{160+4*t}:{163+4*t}], v[{32+4*t}:{35+4*t}]")
    E("s_nop 7"); E("s_nop 7")
    E("s_barrier")
    E("v_lshlrev_b32 v18, 10, v3"); E("v_lshl_add_u32 v18, v4, 1, v18"); E("s_lshl_b32 s3, s20, 6"); E("v_add_u32 v18, s3, v18")
    for t in range(2):
        for j in range(4):
            E(f"v_cvt_pk_bf16_f32 v19, v{32+4*t+j}, v{32+4*t+j}")
            E(f"ds_write_b16 v18, v19 offset:{j*256+t*32}")
    E("s_waitcnt lgkmcnt(0)"); E("s_barrier")
    E("v_lshlrev_b32 v18, 8, v4"); E("v_lshl_add_u32 v18, v3, 4, v18")
    for ks in range(4):
        E(f"ds_read_b128 v[{64+4*ks}:{67+4*ks}], v18 offset:{ks*64}")
    zero(range(40, 48))
    E("s_waitcnt lgkmcnt(0)")
    for t in range(2):
        for ks in range(4):
            E(f"v_mfma_f32_16x16x32_bf16 v[{40+4*t}:{43+4*t}], v[{64+4*ks}:{67+4*ks}], v[{128+16*t+4*ks}:{131+16*t+4*ks}], v[{40+4*t}:{43+4*t}]")
    E("s_nop 7"); E("s_nop 7")
    E("s_mov_b32 s3, 0x3e0330b7")
    E("v_add_u32 v18, s23, v4"); E("v_lshlrev_b32 v18, 1, v18"); E("s_lshl_b32 s19, s21, 10"); E("v_add_u32 v18, s19, v18")
    E("v_cmp_gt_u32 vcc, 16, v1"); E("s_and_saveexec_b64 s[50:51], vcc")
    for t in range(2):
        for j in range(4):
            E(f"v_mul_f32 v19, s3, v{40+4*t+j}"); E("v_cvt_pk_bf16_f32 v19, v19, v19")
            E(f"buffer_store_short v19, v18, s[44:47], 0 offen offset:{t*32}")
            E(f"v_add_u32 v18, 0x8000, v18")
        E("v_subrev_u32 v18, 0x20000, v18")
    E("s_branch K1_done")
    L("K1_ffn")
    E("s_sub_u32 s21, s2, 128")
    E("v_bfe_u32 v9, v1, 4, 1"); E("v_lshlrev_b32 v9, 1, v9"); E("v_and_b32 v13, 7, v1"); E("v_lshrrev_b32 v12, 3, v1")
    E("s_movk_i32 s3, 3584"); E("v_mul_lo_u32 v12, v12, s3")
    for par in range(2):
        E(f"v_xor_b32 v14, v9, v13")
        if par: E("v_xor_b32 v14, 4, v14")
        E(f"v_lshl_add_u32 v{10+par}, v14, 4, v12")
    E("s_mul_i32 s16, s20, 458752"); E("s_lshl_b32 s3, s21, 7"); E("s_add_u32 s16, s16, s3")
    E("s_lshl_b32 s17, s20, 14")
    for m, sr in enumerate((36, 40)):
        for t in range(16):
            E(f"s_add_u32 m0, s17, {m*65536 + t*1024}")
            E(f"s_add_u32 s18, s16, {t*28672}")
            E(f"buffer_load_dwordx4 v{10+(t&1)}, s[{sr}:{sr+3}], s18 offen lds")
    E("v_lshrrev_b32 v9, 1, v5"); E("v_and_b32 v13, 1, v3"); E("v_lshl_add_u32 v9, v13, 1, v9"); E("v_lshlrev_b32 v9, 1, v9")
    E("v_lshl_add_u32 v12, v3, 3, v5"); E("v_lshlrev_b32 v12, 7, v12")
    E("v_and_b32 v13, 1, v6"); E("v_lshl_add_u32 v12, v13, 3, v12")
    E("v_lshrrev_b32 v13, 1, v6"); E("v_lshl_add_u32 v12, v13, 4, v12")
    E("s_lshl_b32 s3, s20, 1"); E("v_xor_b32 v13, s3, v9"); E("v_lshl_add_u32 v14, v13, 4, v12"); E("v_add_u32 v15, 0x10000, v14")
    zero(range(32, 40))
    E("s_waitcnt vmcnt(0)"); E("s_barrier")
    for ks in range(16):
        for t in range(2):
            E(f"ds_read_b64_tr_b16 v[{160+4*t}:{161+4*t}], v{14+t} offset:{ks*4096}")
            E(f"ds_read_b64_tr_b16 v[{162+4*t}:{163+4*t}], v{14+t} offset:{ks*4096+512}")
        E("s_waitcnt lgkmcnt(0)")
        for t in range(2):
            E(f"v_mfma_f32_16x16x32_bf16 v[{32+4*t}:{35+4*t}], v[{64+4*ks}:{67+4*ks}], v[{160+4*t}:{163+4*t}], v[{32+4*t}:{35+4*t}]")
    E("s_nop 7"); E("s_nop 7")
    E("s_lshl_b32 s3, s21, 6"); E("s_lshl_b32 s19, s20, 4"); E("s_add_u32 s3, s3, s19")
    E("v_add_u32 v18, s3, v4"); E("v_lshlrev_b32 v18, 1, v18"); E(f"v_add_u32 v18, {WS_HFFN}, v18")
    E("v_cmp_gt_u32 vcc, 16, v1"); E("s_and_saveexec_b64 s[50:51], vcc")
    for j in range(4):
        E(f"v_max_f32 v19, 0, v{32+j}"); E(f"v_mul_f32 v19, v19, v{36+j}"); E("v_cvt_pk_bf16_f32 v19, v19, v19")
        E(f"buffer_store_short v19, v18, s[44:47], 0 offen"); E("v_add_u32 v18, 3584, v18")
    L("K1_done")
    E("s_endpgm")

K2 = "k2_attn_kernel"
P_OFF = 0; RED_OFF = P_OFF + 16*272; CK_OFF = 8192
def gen_k2():
    head(K2)
    E("s_cmp_ge_u32 s2, 256"); E("s_cbranch_scc1 K2_done")
    E("s_load_dwordx2 s[4:5], s[0:1], 8")
    E("s_load_dwordx2 s[14:15], s[0:1], 104")
    lane_decomp()
    E("s_waitcnt lgkmcnt(0)")
    srd(24, 4, 16777216); srd(44, 14, WS_SIZE)
    E("s_lshr_b32 s21, s2, 7")
    E("s_and_b32 s22, s2, 127")
    E("s_lshr_b32 s23, s22, 5")
    E("s_lshl_b32 s3, s23, 15"); E("s_lshl_b32 s19, s21, 14"); E("s_add_u32 s3, s3, s19")
    E("v_lshlrev_b32 v7, 10, v4"); E("v_lshl_add_u32 v7, v3, 4, v7")
    for ks in range(16):
        E(f"buffer_load_dwordx4 v[{64+4*ks}:{67+4*ks}], v7, s[44:47], s3 offen offset:{ks*64}")
    E("s_lshl_b32 s16, s22, 17"); E("s_lshl_b32 s3, s20, 15"); E("s_add_u32 s16, s16, s3")
    E(f"s_add_u32 s17, s3, {CK_OFF}")
    E("v_lshlrev_b32 v8, 4, v1")
    for t in range(32):
        f = ((t & 3) | ((t >> 3) & 1) << 2) << 1
        E(f"v_xor_b32 v{9+(t&1)}, {f*16}, v8")
        E(f"s_add_u32 m0, s17, {t*1024}")
        E(f"s_add_u32 s18, s16, {t*1024}")
        E(f"buffer_load_dwordx4 v{9+(t&1)}, s[24:27], s18 offen lds")
    E("v_and_b32 v11, 3, v4"); E("v_bfe_u32 v16, v4, 3, 1"); E("v_lshl_add_u32 v11, v16, 2, v11"); E("v_lshlrev_b32 v11, 1, v11")
    E("v_lshlrev_b32 v16, 10, v4"); E("v_add_u32 v16, s17, v16")
    for q in range(4):
        E(f"v_add_u32 v17, {4*q}, v3"); E("v_xor_b32 v17, v17, v11"); E(f"v_lshl_add_u32 v{12+q}, v17, 4, v16")
    zero(range(32, 40))
    E("s_waitcnt vmcnt(0)")
    for ks in range(16):
        for kt in range(2):
            E(f"ds_read_b128 v[{160+4*kt}:{163+4*kt}], v{12+(ks&3)} offset:{(ks>>2)*256+kt*16384}")
        E("s_waitcnt lgkmcnt(0)")
        for kt in range(2):
            E(f"v_mfma_f32_16x16x32_bf16 v[{32+4*kt}:{35+4*kt}], v[{160+4*kt}:{163+4*kt}], v[{64+4*ks}:{67+4*ks}], v[{32+4*kt}:{35+4*kt}]")
    E("s_nop 7"); E("s_nop 7")
    E("v_max3_f32 v20, v32, v33, v34"); E("v_max3_f32 v20, v20, v35, v36"); E("v_max3_f32 v20, v20, v37, v38"); E("v_max_f32 v20, v20, v39")
    E("v_xor_b32 v21, 16, v1"); E("v_lshlrev_b32 v21, 2, v21"); E("v_xor_b32 v22, 32, v1"); E("v_lshlrev_b32 v22, 2, v22")
    E("ds_bpermute_b32 v23, v21, v20"); E("s_waitcnt lgkmcnt(0)"); E("v_max_f32 v20, v20, v23")
    E("ds_bpermute_b32 v23, v22, v20"); E("s_waitcnt lgkmcnt(0)"); E("v_max_f32 v20, v20, v23")
    E("s_lshl_b32 s3, s20, 6"); E("v_lshlrev_b32 v24, 2, v4"); E("v_add_u32 v25, s3, v24")
    E(f"ds_write_b32 v25, v20 offset:{RED_OFF}")
    E("s_waitcnt lgkmcnt(0)"); E("s_barrier")
    for w in range(4): E(f"ds_read_b32 v{26+w}, v24 offset:{RED_OFF+64*w}")
    E("s_waitcnt lgkmcnt(0)")
    E("v_max3_f32 v20, v26, v27, v28"); E("v_max_f32 v20, v20, v29")
    for j in range(8):
        E(f"v_sub_f32 v{32+j}, v{32+j}, v20"); E(f"v_exp_f32 v{32+j}, v{32+j}")
    E("s_nop 0")
    E("s_lshl_b32 s3, s20, 6"); E("v_mul_u32_u24 v25, 272, v4"); E("v_lshl_add_u32 v25, v3, 3, v25"); E("v_add_u32 v25, s3, v25")
    E("v_mov_b32 v30, 0")
    for kt in range(2):
        E(f"v_cvt_pk_bf16_f32 v40, v{32+4*kt}, v{33+4*kt}"); E(f"v_cvt_pk_bf16_f32 v41, v{34+4*kt}, v{35+4*kt}")
        E(f"ds_write_b64 v25, v[40:41] offset:{P_OFF+kt*32}")
        for r in (40, 41):
            E(f"v_lshlrev_b32 v31, 16, v{r}"); E("v_add_f32 v30, v30, v31")
            E(f"v_and_b32 v31, 0xffff0000, v{r}"); E("v_add_f32 v30, v30, v31")
    E("ds_bpermute_b32 v23, v21, v30"); E("s_waitcnt lgkmcnt(0)"); E("v_add_f32 v30, v30, v23")
    E("ds_bpermute_b32 v23, v22, v30"); E("s_waitcnt lgkmcnt(0)"); E("v_add_f32 v30, v30, v23")
    E("s_lshl_b32 s3, s20, 6"); E("v_add_u32 v31, s3, v24")
    E(f"ds_write_b32 v31, v30 offset:{RED_OFF+256}")
    E("s_waitcnt lgkmcnt(0)"); E("s_barrier")
    for w in range(4): E(f"ds_read_b32 v{26+w}, v24 offset:{RED_OFF+256+64*w}")
    E("v_mul_u32_u24 v25, 272, v4"); E("v_lshl_add_u32 v25, v3, 4, v25")
    for ks in range(4): E(f"ds_read_b128 v[{128+4*ks}:{131+4*ks}], v25 offset:{P_OFF+ks*64}")
    E("v_and_b32 v9, 1, v3"); E("v_lshl_add_u32 v9, v9, 2, v5"); E("v_lshlrev_b32 v9, 1, v9")
    E("v_lshl_add_u32 v10, v3, 3, v5"); E("v_lshlrev_b32 v10, 10, v10"); E("v_and_b32 v11, 1, v6"); E("v_lshl_add_u32 v10, v11, 3, v10")
    E("v_lshrrev_b32 v11, 1, v6"); E("v_lshl_add_u32 v10, v11, 4, v10"); E("s_lshl_b32 s3, s20, 8"); E("v_add_u32 v10, s3, v10")
    E("s_waitcnt lgkmcnt(0)")
    E("v_add_f32 v30, v26, v27"); E("v_add_f32 v31, v28, v29"); E("v_add_f32 v21, v30, v31")
    E("s_lshl_b32 s3, s22, 5"); E("s_lshl_b32 s19, s21, 4"); E("s_add_u32 s3, s3, s19")
    E("v_add_u32 v22, s3, v4")
    E("v_lshlrev_b32 v23, 3, v22"); E(f"v_add_u32 v23, {WS_ML}, v23")
    E("v_lshlrev_b32 v22, 11, v22"); E("v_lshl_add_u32 v22, v3, 4, v22"); E("s_lshl_b32 s3, s20, 9"); E("v_add_u32 v22, s3, v22")
    E(f"v_add_u32 v22, {WS_CTXP}, v22")
    E("v_cmp_gt_u32 vcc, 16, v0"); E("s_and_saveexec_b64 s[50:51], vcc")
    E("buffer_store_dwordx2 v[20:21], v23, s[44:47], 0 offen")
    E("s_mov_b64 exec, s[50:51]")
    for nt in range(8):
        E(f"v_xor_b32 v11, {2*nt}, v9"); E("v_lshl_add_u32 v12, v11, 4, v10"); E("v_add_u32 v13, 0x10000, v12")
        zero(range(48, 52))
        for ks in range(4):
            b = 12 + (ks >> 1); off = CK_OFF + (ks & 1)*32768
            E(f"ds_read_b64_tr_b16 v[{160+4*ks}:{161+4*ks}], v{b} offset:{off}")
            E(f"ds_read_b64_tr_b16 v[{162+4*ks}:{163+4*ks}], v{b} offset:{off+4096}")
        E("s_waitcnt lgkmcnt(0)")
        for ks in range(4):
            E(f"v_mfma_f32_16x16x32_bf16 v[48:51], v[{160+4*ks}:{163+4*ks}], v[{128+4*ks}:{131+4*ks}], v[48:51]")
        E("s_nop 7"); E("s_nop 1")
        E(f"buffer_store_dwordx4 v[48:51], v22, s[44:47], 0 offen offset:{nt*64}")
        E("s_nop 1")
    L("K2_done")
    E("s_endpgm")

K3 = "k3_proj_kernel"
SM_OFF = 0; WD_OFF = 8192; UV_OFF = 16384; WO_OFF = 32768
def gen_k3():
    head(K3)
    E("s_cmp_ge_u32 s2, 256"); E("s_cbranch_scc1 K3_done")
    E("s_load_dwordx2 s[4:5], s[0:1], 32")
    E("s_load_dwordx2 s[6:7], s[0:1], 40")
    E("s_load_dwordx2 s[8:9], s[0:1], 72")
    E("s_load_dwordx2 s[10:11], s[0:1], 0")
    E("s_load_dwordx2 s[12:13], s[0:1], 80")
    E("s_load_dwordx2 s[14:15], s[0:1], 104")
    lane_decomp()
    E("s_waitcnt lgkmcnt(0)")
    srd(24, 4, 4194304); srd(28, 6, 4194304); srd(32, 8, 1835008); srd(36, 10, 4096); srd(40, 12, 1024); srd(44, 14, WS_SIZE)
    E("s_and_b32 s21, s2, 31"); E("s_lshr_b32 s22, s2, 5")
    E("s_lshl_b32 s3, s20, 5"); E("v_lshl_add_u32 v7, v3, 3, s3"); E("v_lshlrev_b32 v7, 5, v7"); E("v_add_u32 v7, s21, v7")
    E("v_lshlrev_b32 v8, 3, v7"); E(f"v_add_u32 v8, {WS_ML}, v8")
    E("v_lshlrev_b32 v7, 11, v7"); E("v_lshl_add_u32 v7, v4, 4, v7"); E("s_lshl_b32 s3, s22, 8"); E(f"s_add_u32 s3, s3, {WS_CTXP}")
    for u in range(8):
        E(f"buffer_load_dwordx4 v[{64+4*u}:{67+4*u}], v7, s[44:47], s3 offen"); E("v_add_u32 v7, 0x10000, v7")
    for u in range(8):
        E(f"buffer_load_dwordx2 v[{96+2*u}:{97+2*u}], v8, s[44:47], 0 offen offset:{u*256}")
    E("v_lshlrev_b32 v9, 4, v1"); E("s_lshl_b32 s3, s20, 10")
    E("buffer_load_dwordx4 v[112:115], v9, s[36:39], s3 offen"); E("buffer_load_dwordx4 v[116:119], v9, s[40:43], 0 offen")
    for par in range(2):
        E(f"v_lshlrev_b32 v13, 1, v3")
        if par: E("v_or_b32 v13, 8, v13")
        E("v_xor_b32 v13, v13, v4"); E(f"v_lshlrev_b32 v{10+par}, 4, v13"); E(f"v_lshl_add_u32 v{10+par}, v3, 13, v{10+par}")
    E("s_lshl_b32 s16, s22, 19"); E("s_lshl_b32 s3, s21, 8"); E("s_add_u32 s16, s16, s3"); E("s_lshl_b32 s3, s20, 17"); E("s_add_u32 s16, s16, s3")
    E("s_lshl_b32 s17, s20, 12")
    for t in range(4):
        E(f"s_add_u32 m0, s17, {UV_OFF+t*1024}"); E(f"s_add_u32 s18, s16, {t*32768}")
        E(f"buffer_load_dwordx4 v{10+((t>>1)&1)}, s[24:27], s18 offen lds")
    E("s_lshl_b32 s16, s21, 17"); E("s_lshl_b32 s3, s20, 15"); E("s_add_u32 s16, s16, s3"); E(f"s_add_u32 s17, s3, {WO_OFF}")
    E("v_lshlrev_b32 v12, 4, v1")
    for t in range(32):
        f = ((t & 3) | ((t >> 3) & 1) << 2) << 1
        E(f"v_xor_b32 v{13+(t&1)}, {f*16}, v12")
        E(f"s_add_u32 m0, s17, {t*1024}"); E(f"s_add_u32 s18, s16, {t*1024}")
        E(f"buffer_load_dwordx4 v{13+(t&1)}, s[28:31], s18 offen lds")
    E("s_cmp_lg_u32 s20, 0"); E("s_cbranch_scc1 K3_nowd")
    E("s_mul_i32 s16, s2, 7168")
    for t in range(8):
        f = (t & 3) << 1
        E(f"v_xor_b32 v{13+(t&1)}, {f*16}, v12")
        E(f"s_mov_b32 m0, {WD_OFF+t*1024}"); E(f"s_add_u32 s18, s16, {min(t,6)*1024}")
        E(f"buffer_load_dwordx4 v{13+(t&1)}, s[32:35], s18 offen lds")
    L("K3_nowd")
    E("s_waitcnt vmcnt(36)")
    E("v_max3_f32 v20, v96, v98, v100"); E("v_max3_f32 v20, v20, v102, v104"); E("v_max3_f32 v20, v20, v106, v108"); E("v_max_f32 v20, v20, v110")
    E("v_xor_b32 v21, 16, v1"); E("v_lshlrev_b32 v21, 2, v21"); E("v_xor_b32 v22, 32, v1"); E("v_lshlrev_b32 v22, 2, v22")
    E("ds_bpermute_b32 v23, v21, v20"); E("s_waitcnt lgkmcnt(0)"); E("v_max_f32 v20, v20, v23")
    E("ds_bpermute_b32 v23, v22, v20"); E("s_waitcnt lgkmcnt(0)"); E("v_max_f32 v20, v20, v23")
    E("v_mov_b32 v24, 0"); zero(range(26, 30))
    for u in range(8):
        E(f"v_sub_f32 v25, v{96+2*u}, v20"); E("v_exp_f32 v25, v25"); E("s_nop 0")
        E(f"v_fmac_f32 v24, v25, v{97+2*u}")
        for e in range(4): E(f"v_fmac_f32 v{26+e}, v25, v{64+4*u+e}")
    for r in (24, 26, 27, 28, 29):
        for a in (21, 22):
            E(f"ds_bpermute_b32 v23, v{a}, v{r}"); E("s_waitcnt lgkmcnt(0)"); E(f"v_add_f32 v{r}, v{r}, v23")
    E("v_mov_b32 v30, 0")
    for e in range(4):
        E(f"v_lshlrev_b32 v31, 16, v{112+e}"); E(f"v_lshlrev_b32 v25, 16, v{116+e}"); E("v_fmac_f32 v30, v31, v25")
        E(f"v_and_b32 v31, 0xffff0000, v{112+e}"); E(f"v_and_b32 v25, 0xffff0000, v{116+e}"); E("v_fmac_f32 v30, v31, v25")
    for sh in (1, 2, 4, 8, 16, 32):
        E(f"v_xor_b32 v25, {sh}, v1"); E("v_lshlrev_b32 v25, 2, v25"); E("ds_bpermute_b32 v23, v25, v30"); E("s_waitcnt lgkmcnt(0)"); E("v_add_f32 v30, v30, v23")
    E("v_mul_f32 v30, 0xbfb8aa3b, v30"); E("v_exp_f32 v30, v30"); E("s_nop 0"); E("v_add_f32 v30, 1.0, v30"); E("v_rcp_f32 v30, v30"); E("s_nop 0")
    E("v_rcp_f32 v24, v24"); E("s_nop 0"); E("v_mul_f32 v24, v24, v30")
    for e in range(4): E(f"v_mul_f32 v{26+e}, v{26+e}, v24")
    E("v_cvt_pk_bf16_f32 v26, v26, v27"); E("v_cvt_pk_bf16_f32 v27, v28, v29")
    E("v_lshlrev_b32 v25, 5, v0"); zero(range(40, 44))
    E(f"ds_write_b128 v25, v[40:43] offset:{SM_OFF}"); E(f"ds_write_b128 v25, v[40:43] offset:{SM_OFF+16}")
    E("s_waitcnt lgkmcnt(0)"); E("s_barrier")
    E("s_lshl_b32 s3, s20, 7"); E("v_lshl_add_u32 v25, v4, 3, s3")
    E("v_cmp_gt_u32 vcc, 16, v1"); E("s_and_saveexec_b64 s[50:51], vcc")
    E(f"ds_write_b64 v25, v[26:27] offset:{SM_OFF}")
    E("v_cmp_gt_u32 vcc, 7, v1"); E("s_and_b64 exec, exec, vcc")
    E("s_mul_i32 s3, s2, 7"); E("s_mul_i32 s19, s20, 1792"); E("s_add_u32 s3, s3, s19"); E("v_add_u32 v31, s3, v1"); E("v_lshlrev_b32 v31, 1, v31")
    E(f"buffer_load_ushort v31, v31, s[44:47], 0 offen offset:0")
    out.pop(); E(f"v_add_u32 v31, {WS_HFFN}, v31"); E("buffer_load_ushort v31, v31, s[44:47], 0 offen")
    E("v_sub_f32 v25, 1.0, v30"); E("s_waitcnt vmcnt(0)"); E("v_lshlrev_b32 v31, 16, v31"); E("v_mul_f32 v31, v31, v25"); E("v_cvt_pk_bf16_f32 v31, v31, v31")
    E("s_lshl_b32 s3, s20, 6"); E("v_lshl_add_u32 v25, v1, 1, s3"); E(f"ds_write_b16 v25, v31 offset:{SM_OFF+6144}")
    E("s_mov_b64 exec, s[50:51]")
    E("s_waitcnt vmcnt(0) lgkmcnt(0)"); E("s_barrier")
    E("v_lshlrev_b32 v25, 7, v4"); E("v_lshl_add_u32 v25, v3, 4, v25")
    for ks in range(2): E(f"ds_read_b128 v[{64+4*ks}:{67+4*ks}], v25 offset:{SM_OFF+ks*64}")
    E("v_and_b32 v9, 1, v3"); E("v_lshl_add_u32 v9, v9, 2, v5"); E("v_lshlrev_b32 v9, 1, v9")
    E("v_lshl_add_u32 v12, v3, 3, v5"); E("v_and_b32 v13, 1, v6"); E("v_lshrrev_b32 v14, 1, v6")
    E("v_lshlrev_b32 v15, 8, v12"); E("v_lshl_add_u32 v15, v13, 3, v15"); E("v_lshl_add_u32 v15, v14, 4, v15")
    E("v_lshlrev_b32 v16, 10, v12"); E("v_lshl_add_u32 v16, v13, 3, v16"); E("v_lshl_add_u32 v16, v14, 4, v16")
    zero(range(32, 40)); E("s_lshl_b32 s3, s20, 2")
    for t in range(2):
        E(f"v_mov_b32 v13, s3"); E(f"v_add_u32 v13, {2*t}, v13"); E("v_xor_b32 v13, v13, v9"); E("v_lshl_add_u32 v13, v13, 4, v15")
        for ks in range(2):
            E(f"ds_read_b64_tr_b16 v[{160+4*ks}:{161+4*ks}], v13 offset:{UV_OFF+ks*8192}")
            E(f"ds_read_b64_tr_b16 v[{162+4*ks}:{163+4*ks}], v13 offset:{UV_OFF+ks*8192+1024}")
        E("s_waitcnt lgkmcnt(0)")
        for ks in range(2):
            E(f"v_mfma_f32_16x16x32_bf16 v[{32+4*t}:{35+4*t}], v[{64+4*ks}:{67+4*ks}], v[{160+4*ks}:{163+4*ks}], v[{32+4*t}:{35+4*t}]")
    E("s_nop 7"); E("s_nop 7")
    E("v_lshlrev_b32 v18, 10, v3"); E("v_lshl_add_u32 v18, v4, 1, v18"); E("s_lshl_b32 s3, s20, 6"); E("v_add_u32 v18, s3, v18")
    for t in range(2):
        for j in range(4):
            E(f"v_cvt_pk_bf16_f32 v19, v{32+4*t+j}, v{32+4*t+j}"); E(f"ds_write_b16 v18, v19 offset:{SM_OFF+2048+j*256+t*32}")
    E("s_waitcnt lgkmcnt(0)"); E("s_barrier")
    E("v_lshlrev_b32 v25, 8, v4"); E("v_lshl_add_u32 v25, v3, 4, v25")
    for ks in range(4): E(f"ds_read_b128 v[{64+4*ks}:{67+4*ks}], v25 offset:{SM_OFF+2048+ks*64}")
    E("v_lshlrev_b32 v25, 6, v4"); E("v_lshl_add_u32 v25, v3, 4, v25")
    E(f"ds_read_b128 v[80:83], v25 offset:{SM_OFF+6144}")
    E("v_lshlrev_b32 v17, 10, v5"); E("v_and_b32 v13, 1, v6"); E("v_lshl_add_u32 v17, v13, 3, v17"); E("v_lshl_add_u32 v17, v14, 4, v17"); E("v_lshlrev_b32 v19, 1, v5")
    E("s_lshl_b32 s3, s20, 8"); E("v_add_u32 v16, s3, v16"); E("v_add_u32 v17, s3, v17"); E(f"v_add_u32 v16, {WO_OFF}, v16")
    E("s_lshl_b32 s3, s2, 13"); E("v_lshlrev_b32 v22, 11, v3"); E("v_lshl_add_u32 v22, v4, 2, v22"); E("v_add_u32 v22, s3, v22")
    E("s_lshl_b32 s3, s20, 9"); E("v_add_u32 v22, s3, v22"); E(f"v_add_u32 v22, {WS_OPART}, v22"); E("v_add_u32 v23, 4096, v22")
    for nt in range(8):
        E(f"v_xor_b32 v11, {2*nt}, v9"); E("v_lshl_add_u32 v12, v11, 4, v16"); E("v_add_u32 v13, 0x10000, v12")
        E(f"v_xor_b32 v11, {2*nt}, v19"); E("v_lshl_add_u32 v18, v11, 4, v17")
        zero(range(48, 52))
        for ks in range(4):
            b = 12 + (ks >> 1); off = (ks & 1)*32768
            E(f"ds_read_b64_tr_b16 v[{160+4*ks}:{161+4*ks}], v{b} offset:{off}")
            E(f"ds_read_b64_tr_b16 v[{162+4*ks}:{163+4*ks}], v{b} offset:{off+4096}")
        E(f"v_add_u32 v18, {WD_OFF}, v18")
        E(f"ds_read_b64_tr_b16 v[176:177], v18"); E(f"ds_read_b64_tr_b16 v[178:179], v18 offset:4096")
        E("s_waitcnt lgkmcnt(0)")
        for ks in range(5):
            E(f"v_mfma_f32_16x16x32_bf16 v[48:51], v[{64+4*ks}:{67+4*ks}], v[{160+4*ks}:{163+4*ks}], v[48:51]")
        E("s_nop 7"); E("s_nop 1")
        E("v_cmp_gt_u32 vcc, 16, v1"); E("s_and_saveexec_b64 s[50:51], vcc")
        for j in range(4): E(f"buffer_store_dword v{48+j}, v22, s[44:47], 0 offen offset:{(j&1)*2048+nt*64}") if j<2 else E(f"buffer_store_dword v{48+j}, v23, s[44:47], 0 offen offset:{(j&1)*2048+nt*64}")
        E("s_mov_b64 exec, s[50:51]")
    L("K3_done")
    E("s_endpgm")

K4 = "k4_sum_kernel"
def gen_k4():
    head(K4)
    E("s_cmp_ge_u32 s2, 32"); E("s_cbranch_scc1 K4_done")
    E("s_load_dwordx2 s[4:5], s[0:1], 88"); E("s_load_dwordx2 s[14:15], s[0:1], 104")
    E("v_and_b32 v1, 63, v0"); E("v_lshrrev_b32 v2, 6, v0")
    E("s_waitcnt lgkmcnt(0)")
    srd(24, 4, 4096); srd(44, 14, WS_SIZE)
    E("s_lshl_b32 s3, s2, 6"); E("v_add_u32 v3, s3, v1"); E("v_lshlrev_b32 v4, 2, v3"); E("v_lshl_add_u32 v4, v2, 19, v4"); E(f"v_add_u32 v4, {WS_OPART}, v4")
    for u in range(64):
        E(f"buffer_load_dword v{16+u}, v4, s[44:47], 0 offen"); E("v_add_u32 v4, 0x2000, v4")
    E("s_waitcnt vmcnt(0)")
    for st in (32, 16, 8, 4, 2, 1):
        for u in range(st): E(f"v_add_f32 v{16+u}, v{16+u}, v{16+st+u}")
    E("v_lshlrev_b32 v5, 2, v0"); E("ds_write_b32 v5, v16"); E("s_waitcnt lgkmcnt(0)"); E("s_barrier")
    E("v_lshlrev_b32 v5, 2, v1")
    for w in range(4): E(f"ds_read_b32 v{8+w}, v5 offset:{256*w}")
    E("s_waitcnt lgkmcnt(0)"); E("v_add_f32 v8, v8, v9"); E("v_add_f32 v10, v10, v11"); E("v_add_f32 v8, v8, v10")
    E("v_cvt_pk_bf16_f32 v8, v8, v8"); E("v_lshlrev_b32 v3, 1, v3")
    E("v_cmp_gt_u32 vcc, 64, v0"); E("s_and_saveexec_b64 s[50:51], vcc")
    E("buffer_store_short v8, v3, s[24:27], 0 offen")
    L("K4_done"); E("s_endpgm")

hdr = f"""; generated by work/gen.py
; @launch kernel={K1} grid=(156,1,1) block=(256,1,1) lds=131072
; @launch kernel={K2} grid=(256,1,1) block=(256,1,1) lds={CK_OFF+131072}
; @launch kernel={K3} grid=(256,1,1) block=(256,1,1) lds={WO_OFF+131072}
; @launch kernel={K4} grid=(32,1,1) block=(256,1,1) lds=1024
.amdgcn_target "amdgcn-amd-amdhsa--gfx950"
.text
"""
gen_k1(); gen_k2(); gen_k3(); gen_k4()
txt = hdr + "\n".join(out) + '\n.section .rodata,"a"\n.p2align 6\n'
for k, v in ((K1, 168), (K2, 176), (K3, 180), (K4, 80)):
    txt += ".p2align 6\n" + kd(k, v)
open(f"cdna_kernels/{NAME}.s", "w").write(txt)
```

```python
NAME = "gated_mix__compressed_kv_cla__glu_gated_reglu__decode"
WS_QABS = 0x0
WS_HFFN = 0x20000
WS_ML   = 0x28000
WS_CTXP = 0x100000
WS_OPART= 0x1000000
WS_SIZE = 0x1400000
out = []
def E(s): out.append("    " + s)
def L(s): out.append(s + ":")
def srd(d, lo, nbytes):
    E(f"s_mov_b32 s{d}, s{lo}"); E(f"s_and_b32 s{d+1}, s{lo+1}, 0xffff")
    E(f"s_mov_b32 s{d+2}, {nbytes}"); E(f"s_mov_b32 s{d+3}, 0x00020000")
def srd_off(d, lo, off, nbytes):
    E(f"s_add_u32 s{d}, s{lo}, {off}"); E(f"s_addc_u32 s{d+1}, s{lo+1}, 0"); E(f"s_and_b32 s{d+1}, s{d+1}, 0xffff")
    E(f"s_mov_b32 s{d+2}, {nbytes}"); E(f"s_mov_b32 s{d+3}, 0x00020000")
def head(k):
    out.append(f".globl {k}\n.p2align 8\n.type {k},@function\n{k}:")
def kd(k, v, s=96):
    acc = (v + 3)//4*4
    return (f".amdhsa_kernel {k}\n  .amdhsa_next_free_vgpr {v}\n  .amdhsa_next_free_sgpr {s}\n  .amdhsa_accum_offset {acc}\n"
            "  .amdhsa_group_segment_fixed_size 0\n  .amdhsa_kernarg_size 112\n  .amdhsa_user_sgpr_count 2\n"
            "  .amdhsa_user_sgpr_kernarg_segment_ptr 1\n  .amdhsa_system_sgpr_workgroup_id_x 1\n.end_amdhsa_kernel\n")
def zero(regs):
    for r in regs: E(f"v_mov_b32 v{r}, 0")
def lane_decomp():
    E("v_and_b32 v1, 63, v0"); E("v_lshrrev_b32 v2, 6, v0"); E("v_lshrrev_b32 v3, 4, v1")
    E("v_and_b32 v4, 15, v1"); E("v_lshrrev_b32 v5, 2, v4"); E("v_and_b32 v6, 3, v4")
    E("v_readfirstlane_b32 s20, v2")


def dma_rows1k(lbl, n, sr, sbase, slds, roff=False):
    E("s_mov_b32 s52, 0")
    L(lbl)
    E("s_and_b32 s53, s52, 3"); E("s_lshr_b32 s54, s20, 1" if roff else "s_bfe_u32 s54, s52, 0x10003"); E("s_lshl_b32 s54, s54, 2"); E("s_or_b32 s53, s53, s54"); E("s_lshl_b32 s53, s53, 5")
    E("v_xor_b32 v9, s53, v8")
    E("s_lshl_b32 s54, s52, 10"); E(f"s_add_u32 m0, s{slds}, s54"); E(f"s_add_u32 s54, s{sbase}, s54")
    E(f"buffer_load_dwordx4 v9, s[{sr}:{sr+3}], s54 offen lds")
    E("s_add_u32 s52, s52, 1"); E(f"s_cmp_lt_u32 s52, {n}"); E(f"s_cbranch_scc1 {lbl}")
def afrag_bases(first, base_s):
    E("v_and_b32 v11, 3, v4"); E("v_bfe_u32 v16, v4, 3, 1"); E("v_lshl_add_u32 v11, v16, 2, v11"); E("v_lshlrev_b32 v11, 1, v11")
    E("v_lshlrev_b32 v16, 10, v4"); E(f"v_add_u32 v16, s{base_s}, v16")
    for q in range(4):
        E(f"v_add_u32 v17, {4*q}, v3"); E("v_xor_b32 v17, v17, v11"); E(f"v_lshl_add_u32 v{first+q}, v17, 4, v16")
XO = 131072
def x_dma():
    E("v_lshlrev_b32 v8, 4, v1"); E("s_lshl_b32 s55, s20, 12"); E(f"s_add_u32 s56, s55, {XO}")
    dma_rows1k("K1_xl", 4, 24, 55, 56, True)
    E(f"s_mov_b32 s57, {XO}"); afrag_bases(56, 57)
K1 = "k1_prep_kernel"
def gen_k1():
    head(K1)
    E("s_cmp_ge_u32 s2, 156"); E("s_cbranch_scc1 K1_done")
    E("s_load_dwordx2 s[4:5], s[0:1], 0")
    E("s_load_dwordx2 s[6:7], s[0:1], 16")
    E("s_load_dwordx2 s[8:9], s[0:1], 24")
    E("s_load_dwordx2 s[10:11], s[0:1], 56")
    E("s_load_dwordx2 s[12:13], s[0:1], 64")
    E("s_load_dwordx2 s[14:15], s[0:1], 104")
    lane_decomp()
    E("s_waitcnt lgkmcnt(0)")
    srd(24, 4, 4096)
    srd(28, 6, 4194304)
    srd(32, 8, 4194304)
    srd(36, 10, 1835008)
    srd(40, 12, 1835008)
    srd(44, 14, WS_SIZE)
    x_dma()
    E("s_cmp_ge_u32 s2, 128"); E("s_cbranch_scc1 K1_ffn")
    E("s_and_b32 s21, s2, 31")
    E("s_lshr_b32 s22, s2, 5")
    E("s_lshl_b32 s23, s22, 7"); E("s_lshl_b32 s3, s20, 5"); E("s_add_u32 s23, s23, s3")
    E("v_add_u32 v8, s23, v4"); E("v_lshlrev_b32 v8, 13, v8"); E("v_lshl_add_u32 v8, v3, 4, v8")
    E("s_lshl_b32 s3, s21, 8")
    for t in range(2):
        for ks in range(4):
            E(f"buffer_load_dwordx4 v[{128+16*t+4*ks}:{131+16*t+4*ks}], v8, s[32:35], s3 offen offset:{ks*64}")
        if t == 0: E("v_add_u32 v8, 0x20000, v8")
    for par in range(2):
        E(f"v_lshlrev_b32 v9, 1, v3")
        if par: E("v_or_b32 v9, 8, v9")
        E("v_xor_b32 v9, v9, v4"); E(f"v_lshlrev_b32 v{10+par}, 4, v9"); E(f"v_lshl_add_u32 v{10+par}, v3, 13, v{10+par}")
    E("s_lshl_b32 s16, s20, 20"); E("s_add_u32 s16, s16, s3")
    E("s_lshl_b32 s17, s20, 15")
    E("s_mov_b32 s52, 0"); L("K1_ql")
    for t in range(4):
        E(f"s_add_u32 m0, s17, {t*1024}")
        E(f"s_add_u32 s18, s16, {t*32768}")
        E(f"buffer_load_dwordx4 v{10+((t>>1)&1)}, s[28:31], s18 offen lds")
    E("s_add_u32 s17, s17, 4096"); E("s_add_u32 s16, s16, 131072"); E("s_add_u32 s52, s52, 1"); E("s_cmp_lt_u32 s52, 8"); E("s_cbranch_scc1 K1_ql")
    E("v_and_b32 v9, 1, v3"); E("v_lshl_add_u32 v9, v9, 2, v5"); E("v_lshlrev_b32 v9, 1, v9")
    E("v_lshl_add_u32 v12, v3, 3, v5"); E("v_lshlrev_b32 v12, 8, v12")
    E("v_and_b32 v13, 1, v6"); E("v_lshl_add_u32 v12, v13, 3, v12")
    E("v_lshrrev_b32 v13, 1, v6"); E("v_lshl_add_u32 v12, v13, 4, v12")
    E("s_lshl_b32 s3, s20, 2")
    for t in range(2):
        E(f"v_mov_b32 v13, s3"); E(f"v_add_u32 v13, {2*t}, v13"); E("v_xor_b32 v13, v13, v9")
        E(f"v_lshl_add_u32 v{14+2*t}, v13, 4, v12"); E(f"v_add_u32 v{15+2*t}, 0x10000, v{14+2*t}")
    zero(range(32, 40))
    E("s_waitcnt vmcnt(0)"); E("s_barrier")
    E("s_mov_b32 s52, 0"); L("K1_qm")
    for ks in range(4):
        E(f"ds_read_b128 v[{64+4*ks}:{67+4*ks}], v{56+ks}"); E(f"v_add_u32 v{56+ks}, 256, v{56+ks}")
        for t in range(2):
            b = 14+2*t; off = ks*8192
            E(f"ds_read_b64_tr_b16 v[{160+4*t+8*ks}:{161+4*t+8*ks}], v{b} offset:{off}")
            E(f"ds_read_b64_tr_b16 v[{162+4*t+8*ks}:{163+4*t+8*ks}], v{b} offset:{off+1024}")
    for ks in range(4):
        E(f"s_waitcnt lgkmcnt({15-5*ks})")
        for t in range(2):
            E(f"v_mfma_f32_16x16x32_bf16 v[{32+4*t}:{35+4*t}], v[{64+4*ks}:{67+4*ks}], v[{160+4*t+8*ks}:{163+4*t+8*ks}], v[{32+4*t}:{35+4*t}]")
    E("v_add_u32 v14, 0x8000, v14"); E("v_add_u32 v16, 0x8000, v16"); E("s_add_u32 s52, s52, 1"); E("s_cmp_lt_u32 s52, 4"); E("s_cbranch_scc1 K1_qm")
    E("s_nop 7"); E("s_nop 7")
    E("s_barrier")
    E("v_lshlrev_b32 v18, 10, v3"); E("v_lshl_add_u32 v18, v4, 1, v18"); E("s_lshl_b32 s3, s20, 6"); E("v_add_u32 v18, s3, v18")
    for t in range(2):
        for j in range(4):
            E(f"v_cvt_pk_bf16_f32 v19, v{32+4*t+j}, v{32+4*t+j}")
            E(f"ds_write_b16 v18, v19 offset:{j*256+t*32}")
    E("s_waitcnt lgkmcnt(0)"); E("s_barrier")
    E("v_lshlrev_b32 v18, 8, v4"); E("v_lshl_add_u32 v18, v3, 4, v18")
    for ks in range(4):
        E(f"ds_read_b128 v[{64+4*ks}:{67+4*ks}], v18 offset:{ks*64}")
    zero(range(40, 48))
    E("s_waitcnt lgkmcnt(0)")
    for t in range(2):
        for ks in range(4):
            E(f"v_mfma_f32_16x16x32_bf16 v[{40+4*t}:{43+4*t}], v[{64+4*ks}:{67+4*ks}], v[{128+16*t+4*ks}:{131+16*t+4*ks}], v[{40+4*t}:{43+4*t}]")
    E("s_nop 7"); E("s_nop 7")
    E("s_mov_b32 s3, 0x3e0330b7")
    E("v_add_u32 v18, s23, v4"); E("v_lshlrev_b32 v18, 1, v18"); E("s_lshl_b32 s19, s21, 10"); E("v_add_u32 v18, s19, v18")
    E("v_cmp_gt_u32 vcc, 16, v1"); E("s_and_saveexec_b64 s[50:51], vcc")
    for t in range(2):
        for j in range(4):
            E(f"v_mul_f32 v19, s3, v{40+4*t+j}"); E("v_cvt_pk_bf16_f32 v19, v19, v19")
            E(f"buffer_store_short v19, v18, s[44:47], 0 offen offset:{t*32}")
            E(f"v_add_u32 v18, 0x8000, v18")
        E("v_subrev_u32 v18, 0x20000, v18")
    E("s_branch K1_done")
    L("K1_ffn")
    E("s_sub_u32 s21, s2, 128")
    E("v_bfe_u32 v9, v1, 4, 1"); E("v_lshlrev_b32 v9, 1, v9"); E("v_and_b32 v13, 7, v1"); E("v_lshrrev_b32 v12, 3, v1")
    E("s_movk_i32 s3, 3584"); E("v_mul_lo_u32 v12, v12, s3")
    for par in range(2):
        E(f"v_xor_b32 v14, v9, v13")
        if par: E("v_xor_b32 v14, 4, v14")
        E(f"v_lshl_add_u32 v{10+par}, v14, 4, v12")
    E("s_mul_i32 s16, s20, 458752"); E("s_lshl_b32 s3, s21, 7"); E("s_add_u32 s16, s16, s3")
    E("s_lshl_b32 s17, s20, 14")
    for m, sr in enumerate((36, 40)):
        E("s_mov_b32 s52, 0"); E("s_mov_b32 s58, s16"); E(f"s_add_u32 s59, s17, {m*65536}"); L(f"K1_fl{m}")
        for t in range(2):
            E(f"s_add_u32 m0, s59, {t*1024}")
            E(f"s_add_u32 s18, s58, {t*28672}")
            E(f"buffer_load_dwordx4 v{10+(t&1)}, s[{sr}:{sr+3}], s18 offen lds")
        E("s_add_u32 s59, s59, 2048"); E("s_add_u32 s58, s58, 57344"); E("s_add_u32 s52, s52, 1"); E("s_cmp_lt_u32 s52, 8"); E(f"s_cbranch_scc1 K1_fl{m}")
    E("v_lshrrev_b32 v9, 1, v5"); E("v_and_b32 v13, 1, v3"); E("v_lshl_add_u32 v9, v13, 1, v9"); E("v_lshlrev_b32 v9, 1, v9")
    E("v_lshl_add_u32 v12, v3, 3, v5"); E("v_lshlrev_b32 v12, 7, v12")
    E("v_and_b32 v13, 1, v6"); E("v_lshl_add_u32 v12, v13, 3, v12")
    E("v_lshrrev_b32 v13, 1, v6"); E("v_lshl_add_u32 v12, v13, 4, v12")
    E("s_lshl_b32 s3, s20, 1"); E("v_xor_b32 v13, s3, v9"); E("v_lshl_add_u32 v14, v13, 4, v12"); E("v_add_u32 v15, 0x10000, v14")
    zero(range(32, 40))
    E("s_waitcnt vmcnt(0)"); E("s_barrier")
    E("s_mov_b32 s52, 0"); L("K1_fm")
    for ks in range(4):
        E(f"ds_read_b128 v[{64+4*ks}:{67+4*ks}], v{56+ks}"); E(f"v_add_u32 v{56+ks}, 256, v{56+ks}")
        for t in range(2):
            E(f"ds_read_b64_tr_b16 v[{160+4*t+8*ks}:{161+4*t+8*ks}], v{14+t} offset:{ks*4096}")
            E(f"ds_read_b64_tr_b16 v[{162+4*t+8*ks}:{163+4*t+8*ks}], v{14+t} offset:{ks*4096+512}")
    for ks in range(4):
        E(f"s_waitcnt lgkmcnt({15-5*ks})")
        for t in range(2):
            E(f"v_mfma_f32_16x16x32_bf16 v[{32+4*t}:{35+4*t}], v[{64+4*ks}:{67+4*ks}], v[{160+4*t+8*ks}:{163+4*t+8*ks}], v[{32+4*t}:{35+4*t}]")
    E("v_add_u32 v14, 0x4000, v14"); E("v_add_u32 v15, 0x4000, v15"); E("s_add_u32 s52, s52, 1"); E("s_cmp_lt_u32 s52, 4"); E("s_cbranch_scc1 K1_fm")
    E("s_nop 7"); E("s_nop 7")
    E("s_lshl_b32 s3, s21, 6"); E("s_lshl_b32 s19, s20, 4"); E("s_add_u32 s3, s3, s19")
    E("v_add_u32 v18, s3, v4"); E("v_lshlrev_b32 v18, 1, v18"); E(f"v_add_u32 v18, {WS_HFFN}, v18")
    E("v_cmp_gt_u32 vcc, 16, v1"); E("s_and_saveexec_b64 s[50:51], vcc")
    for j in range(4):
        E(f"v_max_f32 v19, 0, v{32+j}"); E(f"v_mul_f32 v19, v19, v{36+j}"); E("v_cvt_pk_bf16_f32 v19, v19, v19")
        E(f"buffer_store_short v19, v18, s[44:47], 0 offen"); E("v_add_u32 v18, 3584, v18")
    L("K1_done")
    E("s_endpgm")

K2 = "k2_attn_kernel"
P_OFF = 0; RED_OFF = P_OFF + 16*272; CK_OFF = 8192
def gen_k2():
    head(K2)
    E("s_cmp_ge_u32 s2, 256"); E("s_cbranch_scc1 K2_done")
    E("s_load_dwordx2 s[4:5], s[0:1], 8")
    E("s_load_dwordx2 s[14:15], s[0:1], 104")
    lane_decomp()
    E("s_waitcnt lgkmcnt(0)")
    srd(24, 4, 16777216); srd(44, 14, WS_SIZE)
    E("s_lshr_b32 s21, s2, 7")
    E("s_and_b32 s22, s2, 127")
    E("s_lshr_b32 s23, s22, 5")
    E("s_lshl_b32 s3, s23, 15"); E("s_lshl_b32 s19, s21, 14"); E("s_add_u32 s3, s3, s19")
    E("v_lshlrev_b32 v8, 4, v1"); E("s_lshl_b32 s55, s20, 12"); E(f"s_add_u32 s56, s55, {CK_OFF+131072}"); E("s_add_u32 s55, s55, s3")
    dma_rows1k("K2_ql", 4, 44, 55, 56, True)
    E(f"s_mov_b32 s57, {CK_OFF+131072}"); afrag_bases(56, 57)
    E("s_lshl_b32 s16, s22, 17"); E("s_lshl_b32 s3, s20, 15"); E("s_add_u32 s16, s16, s3")
    E(f"s_add_u32 s17, s3, {CK_OFF}")
    E("v_lshlrev_b32 v8, 4, v1")
    dma_rows1k("K2_cl", 32, 24, 16, 17)
    E("v_and_b32 v11, 3, v4"); E("v_bfe_u32 v16, v4, 3, 1"); E("v_lshl_add_u32 v11, v16, 2, v11"); E("v_lshlrev_b32 v11, 1, v11")
    E("v_lshlrev_b32 v16, 10, v4"); E("v_add_u32 v16, s17, v16")
    for q in range(4):
        E(f"v_add_u32 v17, {4*q}, v3"); E("v_xor_b32 v17, v17, v11"); E(f"v_lshl_add_u32 v{12+q}, v17, 4, v16")
    zero(range(32, 40))
    E("s_waitcnt vmcnt(0)"); E("s_barrier"); E("s_mov_b32 s52, 0"); L("K2_qk")
    for ks in range(4):
        E(f"ds_read_b128 v[{64+4*ks}:{67+4*ks}], v{56+ks}"); E(f"v_add_u32 v{56+ks}, 256, v{56+ks}")
        for kt in range(2):
            E(f"ds_read_b128 v[{160+4*kt+8*ks}:{163+4*kt+8*ks}], v{12+(ks&3)} offset:{kt*16384}")
        E(f"v_add_u32 v{12+ks}, 256, v{12+ks}")
    for ks in range(4):
        E(f"s_waitcnt lgkmcnt({9-3*ks})")
        for kt in range(2):
            E(f"v_mfma_f32_16x16x32_bf16 v[{32+4*kt}:{35+4*kt}], v[{160+4*kt+8*ks}:{163+4*kt+8*ks}], v[{64+4*ks}:{67+4*ks}], v[{32+4*kt}:{35+4*kt}]")
    E("s_add_u32 s52, s52, 1"); E("s_cmp_lt_u32 s52, 4"); E("s_cbranch_scc1 K2_qk")
    E("s_nop 7"); E("s_nop 7")
    E("v_max3_f32 v20, v32, v33, v34"); E("v_max3_f32 v20, v20, v35, v36"); E("v_max3_f32 v20, v20, v37, v38"); E("v_max_f32 v20, v20, v39")
    E("v_xor_b32 v21, 16, v1"); E("v_lshlrev_b32 v21, 2, v21"); E("v_xor_b32 v22, 32, v1"); E("v_lshlrev_b32 v22, 2, v22")
    E("ds_bpermute_b32 v23, v21, v20"); E("s_waitcnt lgkmcnt(0)"); E("v_max_f32 v20, v20, v23")
    E("ds_bpermute_b32 v23, v22, v20"); E("s_waitcnt lgkmcnt(0)"); E("v_max_f32 v20, v20, v23")
    E("s_lshl_b32 s3, s20, 6"); E("v_lshlrev_b32 v24, 2, v4"); E("v_add_u32 v25, s3, v24")
    E(f"ds_write_b32 v25, v20 offset:{RED_OFF}")
    E("s_waitcnt lgkmcnt(0)"); E("s_barrier")
    for w in range(4): E(f"ds_read_b32 v{26+w}, v24 offset:{RED_OFF+64*w}")
    E("s_waitcnt lgkmcnt(0)")
    E("v_max3_f32 v20, v26, v27, v28"); E("v_max_f32 v20, v20, v29")
    for j in range(8):
        E(f"v_sub_f32 v{32+j}, v{32+j}, v20"); E(f"v_exp_f32 v{32+j}, v{32+j}")
    E("s_nop 0")
    E("s_lshl_b32 s3, s20, 6"); E("v_mul_u32_u24 v25, 272, v4"); E("v_lshl_add_u32 v25, v3, 3, v25"); E("v_add_u32 v25, s3, v25")
    E("v_mov_b32 v30, 0")
    for kt in range(2):
        E(f"v_cvt_pk_bf16_f32 v40, v{32+4*kt}, v{33+4*kt}"); E(f"v_cvt_pk_bf16_f32 v41, v{34+4*kt}, v{35+4*kt}")
        E(f"ds_write_b64 v25, v[40:41] offset:{P_OFF+kt*32}")
        for r in (40, 41):
            E(f"v_lshlrev_b32 v31, 16, v{r}"); E("v_add_f32 v30, v30, v31")
            E(f"v_and_b32 v31, 0xffff0000, v{r}"); E("v_add_f32 v30, v30, v31")
    E("ds_bpermute_b32 v23, v21, v30"); E("s_waitcnt lgkmcnt(0)"); E("v_add_f32 v30, v30, v23")
    E("ds_bpermute_b32 v23, v22, v30"); E("s_waitcnt lgkmcnt(0)"); E("v_add_f32 v30, v30, v23")
    E("s_lshl_b32 s3, s20, 6"); E("v_add_u32 v31, s3, v24")
    E(f"ds_write_b32 v31, v30 offset:{RED_OFF+256}")
    E("s_waitcnt lgkmcnt(0)"); E("s_barrier")
    for w in range(4): E(f"ds_read_b32 v{26+w}, v24 offset:{RED_OFF+256+64*w}")
    E("v_mul_u32_u24 v25, 272, v4"); E("v_lshl_add_u32 v25, v3, 4, v25")
    for ks in range(4): E(f"ds_read_b128 v[{128+4*ks}:{131+4*ks}], v25 offset:{P_OFF+ks*64}")
    E("v_and_b32 v9, 1, v3"); E("v_lshl_add_u32 v9, v9, 2, v5"); E("v_lshlrev_b32 v9, 1, v9")
    E("v_lshl_add_u32 v10, v3, 3, v5"); E("v_lshlrev_b32 v10, 10, v10"); E("v_and_b32 v11, 1, v6"); E("v_lshl_add_u32 v10, v11, 3, v10")
    E("v_lshrrev_b32 v11, 1, v6"); E("v_lshl_add_u32 v10, v11, 4, v10"); E("s_lshl_b32 s3, s20, 8"); E("v_add_u32 v10, s3, v10")
    E("s_waitcnt lgkmcnt(0)")
    E("v_add_f32 v30, v26, v27"); E("v_add_f32 v31, v28, v29"); E("v_add_f32 v21, v30, v31")
    E("s_lshl_b32 s3, s22, 5"); E("s_lshl_b32 s19, s21, 4"); E("s_add_u32 s3, s3, s19")
    E("v_add_u32 v22, s3, v4")
    E("v_lshlrev_b32 v23, 3, v22"); E(f"v_add_u32 v23, {WS_ML}, v23")
    E("v_lshlrev_b32 v22, 11, v22"); E("v_lshl_add_u32 v22, v3, 4, v22"); E("s_lshl_b32 s3, s20, 9"); E("v_add_u32 v22, s3, v22")
    E(f"v_add_u32 v22, {WS_CTXP}, v22")
    E("v_cmp_gt_u32 vcc, 16, v0"); E("s_and_saveexec_b64 s[50:51], vcc")
    E("buffer_store_dwordx2 v[20:21], v23, s[44:47], 0 offen")
    E("s_mov_b64 exec, s[50:51]")
    E("s_mov_b32 s52, 0"); L("K2_pv")
    for nt in range(1):
        E(f"v_xor_b32 v11, s52, v9"); E("v_lshl_add_u32 v12, v11, 4, v10"); E("v_add_u32 v13, 0x10000, v12")
        zero(range(48, 52))
        for ks in range(4):
            b = 12 + (ks >> 1); off = CK_OFF + (ks & 1)*32768
            E(f"ds_read_b64_tr_b16 v[{160+4*ks}:{161+4*ks}], v{b} offset:{off}")
            E(f"ds_read_b64_tr_b16 v[{162+4*ks}:{163+4*ks}], v{b} offset:{off+4096}")
        E("s_waitcnt lgkmcnt(0)")
        for ks in range(4):
            E(f"v_mfma_f32_16x16x32_bf16 v[48:51], v[{160+4*ks}:{163+4*ks}], v[{128+4*ks}:{131+4*ks}], v[48:51]")
        E("s_nop 7"); E("s_nop 1")
        E(f"buffer_store_dwordx4 v[48:51], v22, s[44:47], 0 offen offset:{nt*64}")
        E("s_nop 1"); E("v_add_u32 v22, 64, v22")
    E("s_add_u32 s52, s52, 2"); E("s_cmp_lt_u32 s52, 16"); E("s_cbranch_scc1 K2_pv")
    L("K2_done")
    E("s_endpgm")

K3 = "k3_proj_kernel"
SM_OFF = 0; WD_OFF = 8192; UV_OFF = 16384; WO_OFF = 32768
def gen_k3():
    head(K3)
    E("s_cmp_ge_u32 s2, 256"); E("s_cbranch_scc1 K3_done")
    E("s_load_dwordx2 s[4:5], s[0:1], 32")
    E("s_load_dwordx2 s[6:7], s[0:1], 40")
    E("s_load_dwordx2 s[8:9], s[0:1], 72")
    E("s_load_dwordx2 s[10:11], s[0:1], 0")
    E("s_load_dwordx2 s[12:13], s[0:1], 80")
    E("s_load_dwordx2 s[14:15], s[0:1], 104")
    lane_decomp()
    E("s_waitcnt lgkmcnt(0)")
    srd(24, 4, 4194304); srd(28, 6, 4194304); srd(32, 8, 1835008); srd(36, 10, 4096); srd(40, 12, 1024); srd(44, 14, WS_SIZE)
    E("s_and_b32 s21, s2, 31"); E("s_lshr_b32 s22, s2, 5")
    E("s_lshl_b32 s3, s20, 5"); E("v_lshl_add_u32 v7, v3, 3, s3"); E("v_lshlrev_b32 v7, 5, v7"); E("v_add_u32 v7, s21, v7")
    E("v_lshlrev_b32 v8, 3, v7"); E(f"v_add_u32 v8, {WS_ML}, v8")
    E("v_lshlrev_b32 v7, 11, v7"); E("v_lshl_add_u32 v7, v4, 4, v7"); E("s_lshl_b32 s3, s22, 8"); E(f"s_add_u32 s3, s3, {WS_CTXP}")
    for u in range(8):
        E(f"buffer_load_dwordx4 v[{64+4*u}:{67+4*u}], v7, s[44:47], s3 offen"); E("v_add_u32 v7, 0x10000, v7")
    for u in range(8):
        E(f"buffer_load_dwordx2 v[{96+2*u}:{97+2*u}], v8, s[44:47], 0 offen offset:{u*256}")
    E("v_lshlrev_b32 v9, 4, v1"); E("s_lshl_b32 s3, s20, 10")
    E("buffer_load_dwordx4 v[112:115], v9, s[36:39], s3 offen"); E("buffer_load_dwordx4 v[116:119], v9, s[40:43], 0 offen")
    for par in range(2):
        E(f"v_lshlrev_b32 v13, 1, v3")
        if par: E("v_or_b32 v13, 8, v13")
        E("v_xor_b32 v13, v13, v4"); E(f"v_lshlrev_b32 v{10+par}, 4, v13"); E(f"v_lshl_add_u32 v{10+par}, v3, 13, v{10+par}")
    E("s_lshl_b32 s16, s22, 19"); E("s_lshl_b32 s3, s21, 8"); E("s_add_u32 s16, s16, s3"); E("s_lshl_b32 s3, s20, 17"); E("s_add_u32 s16, s16, s3")
    E("s_lshl_b32 s17, s20, 12")
    for t in range(4):
        E(f"s_add_u32 m0, s17, {UV_OFF+t*1024}"); E(f"s_add_u32 s18, s16, {t*32768}")
        E(f"buffer_load_dwordx4 v{10+((t>>1)&1)}, s[24:27], s18 offen lds")
    E("s_lshl_b32 s16, s21, 17"); E("s_lshl_b32 s3, s20, 15"); E("s_add_u32 s16, s16, s3"); E(f"s_add_u32 s17, s3, {WO_OFF}")
    E("v_lshlrev_b32 v12, 4, v1")
    E("v_lshlrev_b32 v8, 4, v1"); dma_rows1k("K3_ol", 32, 28, 16, 17)
    E("s_cmp_lg_u32 s20, 0"); E("s_cbranch_scc1 K3_nowd")
    E("s_mul_i32 s16, s2, 7168")
    for t in range(8):
        f = (t & 3) << 1
        E(f"v_xor_b32 v{13+(t&1)}, {f*16}, v12")
        E(f"s_mov_b32 m0, {WD_OFF+t*1024}"); E(f"s_add_u32 s18, s16, {min(t,6)*1024}")
        E(f"buffer_load_dwordx4 v{13+(t&1)}, s[32:35], s18 offen lds")
    L("K3_nowd")
    E("s_waitcnt vmcnt(36)")
    E("v_max3_f32 v20, v96, v98, v100"); E("v_max3_f32 v20, v20, v102, v104"); E("v_max3_f32 v20, v20, v106, v108"); E("v_max_f32 v20, v20, v110")
    E("v_xor_b32 v21, 16, v1"); E("v_lshlrev_b32 v21, 2, v21"); E("v_xor_b32 v22, 32, v1"); E("v_lshlrev_b32 v22, 2, v22")
    E("ds_bpermute_b32 v23, v21, v20"); E("s_waitcnt lgkmcnt(0)"); E("v_max_f32 v20, v20, v23")
    E("ds_bpermute_b32 v23, v22, v20"); E("s_waitcnt lgkmcnt(0)"); E("v_max_f32 v20, v20, v23")
    E("v_mov_b32 v24, 0"); zero(range(26, 30))
    for u in range(8):
        E(f"v_sub_f32 v25, v{96+2*u}, v20"); E("v_exp_f32 v25, v25"); E("s_nop 0")
        E(f"v_fmac_f32 v24, v25, v{97+2*u}")
        for e in range(4): E(f"v_fmac_f32 v{26+e}, v25, v{64+4*u+e}")
    for r in (24, 26, 27, 28, 29):
        for a in (21, 22):
            E(f"ds_bpermute_b32 v23, v{a}, v{r}"); E("s_waitcnt lgkmcnt(0)"); E(f"v_add_f32 v{r}, v{r}, v23")
    E("v_mov_b32 v30, 0")
    for e in range(4):
        E(f"v_lshlrev_b32 v31, 16, v{112+e}"); E(f"v_lshlrev_b32 v25, 16, v{116+e}"); E("v_fmac_f32 v30, v31, v25")
        E(f"v_and_b32 v31, 0xffff0000, v{112+e}"); E(f"v_and_b32 v25, 0xffff0000, v{116+e}"); E("v_fmac_f32 v30, v31, v25")
    for sh in (1, 2, 4, 8, 16, 32):
        E(f"v_xor_b32 v25, {sh}, v1"); E("v_lshlrev_b32 v25, 2, v25"); E("ds_bpermute_b32 v23, v25, v30"); E("s_waitcnt lgkmcnt(0)"); E("v_add_f32 v30, v30, v23")
    E("v_mul_f32 v30, 0xbfb8aa3b, v30"); E("v_exp_f32 v30, v30"); E("s_nop 0"); E("v_add_f32 v30, 1.0, v30"); E("v_rcp_f32 v30, v30"); E("s_nop 0")
    E("v_rcp_f32 v24, v24"); E("s_nop 0"); E("v_mul_f32 v24, v24, v30")
    for e in range(4): E(f"v_mul_f32 v{26+e}, v{26+e}, v24")
    E("v_cvt_pk_bf16_f32 v26, v26, v27"); E("v_cvt_pk_bf16_f32 v27, v28, v29")
    E("v_lshlrev_b32 v25, 5, v0"); zero(range(40, 44))
    E(f"ds_write_b128 v25, v[40:43] offset:{SM_OFF}"); E(f"ds_write_b128 v25, v[40:43] offset:{SM_OFF+16}")
    E("s_waitcnt lgkmcnt(0)"); E("s_barrier")
    E("s_lshl_b32 s3, s20, 7"); E("v_lshl_add_u32 v25, v4, 3, s3")
    E("v_cmp_gt_u32 vcc, 16, v1"); E("s_and_saveexec_b64 s[50:51], vcc")
    E(f"ds_write_b64 v25, v[26:27] offset:{SM_OFF}")
    E("v_cmp_gt_u32 vcc, 7, v1"); E("s_and_b64 exec, exec, vcc")
    E("s_mul_i32 s3, s2, 7"); E("s_mul_i32 s19, s20, 1792"); E("s_add_u32 s3, s3, s19"); E("v_add_u32 v31, s3, v1"); E("v_lshlrev_b32 v31, 1, v31")
    E(f"buffer_load_ushort v31, v31, s[44:47], 0 offen offset:0")
    out.pop(); E(f"v_add_u32 v31, {WS_HFFN}, v31"); E("buffer_load_ushort v31, v31, s[44:47], 0 offen")
    E("v_sub_f32 v25, 1.0, v30"); E("s_waitcnt vmcnt(0)"); E("v_lshlrev_b32 v31, 16, v31"); E("v_mul_f32 v31, v31, v25"); E("v_cvt_pk_bf16_f32 v31, v31, v31")
    E("s_lshl_b32 s3, s20, 6"); E("v_lshl_add_u32 v25, v1, 1, s3"); E(f"ds_write_b16 v25, v31 offset:{SM_OFF+6144}")
    E("s_mov_b64 exec, s[50:51]")
    E("s_waitcnt vmcnt(0) lgkmcnt(0)"); E("s_barrier")
    E("v_lshlrev_b32 v25, 7, v4"); E("v_lshl_add_u32 v25, v3, 4, v25")
    for ks in range(2): E(f"ds_read_b128 v[{64+4*ks}:{67+4*ks}], v25 offset:{SM_OFF+ks*64}")
    E("v_and_b32 v9, 1, v3"); E("v_lshl_add_u32 v9, v9, 2, v5"); E("v_lshlrev_b32 v9, 1, v9")
    E("v_lshl_add_u32 v12, v3, 3, v5"); E("v_and_b32 v13, 1, v6"); E("v_lshrrev_b32 v14, 1, v6")
    E("v_lshlrev_b32 v15, 8, v12"); E("v_lshl_add_u32 v15, v13, 3, v15"); E("v_lshl_add_u32 v15, v14, 4, v15")
    E("v_lshlrev_b32 v16, 10, v12"); E("v_lshl_add_u32 v16, v13, 3, v16"); E("v_lshl_add_u32 v16, v14, 4, v16")
    zero(range(32, 40)); E("s_lshl_b32 s3, s20, 2")
    for t in range(2):
        E(f"v_mov_b32 v13, s3"); E(f"v_add_u32 v13, {2*t}, v13"); E("v_xor_b32 v13, v13, v9"); E("v_lshl_add_u32 v13, v13, 4, v15")
        for ks in range(2):
            E(f"ds_read_b64_tr_b16 v[{160+4*ks}:{161+4*ks}], v13 offset:{UV_OFF+ks*8192}")
            E(f"ds_read_b64_tr_b16 v[{162+4*ks}:{163+4*ks}], v13 offset:{UV_OFF+ks*8192+1024}")
        E("s_waitcnt lgkmcnt(0)")
        for ks in range(2):
            E(f"v_mfma_f32_16x16x32_bf16 v[{32+4*t}:{35+4*t}], v[{64+4*ks}:{67+4*ks}], v[{160+4*ks}:{163+4*ks}], v[{32+4*t}:{35+4*t}]")
    E("s_nop 7"); E("s_nop 7")
    E("v_lshlrev_b32 v18, 10, v3"); E("v_lshl_add_u32 v18, v4, 1, v18"); E("s_lshl_b32 s3, s20, 6"); E("v_add_u32 v18, s3, v18")
    for t in range(2):
        for j in range(4):
            E(f"v_cvt_pk_bf16_f32 v19, v{32+4*t+j}, v{32+4*t+j}"); E(f"ds_write_b16 v18, v19 offset:{SM_OFF+2048+j*256+t*32}")
    E("s_waitcnt lgkmcnt(0)"); E("s_barrier")
    E("v_lshlrev_b32 v25, 8, v4"); E("v_lshl_add_u32 v25, v3, 4, v25")
    for ks in range(4): E(f"ds_read_b128 v[{64+4*ks}:{67+4*ks}], v25 offset:{SM_OFF+2048+ks*64}")
    E("v_lshlrev_b32 v25, 6, v4"); E("v_lshl_add_u32 v25, v3, 4, v25")
    E(f"ds_read_b128 v[80:83], v25 offset:{SM_OFF+6144}")
    E("v_lshlrev_b32 v17, 10, v5"); E("v_and_b32 v13, 1, v6"); E("v_lshl_add_u32 v17, v13, 3, v17"); E("v_lshl_add_u32 v17, v14, 4, v17"); E("v_lshlrev_b32 v19, 1, v5")
    E("s_lshl_b32 s3, s20, 8"); E("v_add_u32 v16, s3, v16"); E("v_add_u32 v17, s3, v17"); E(f"v_add_u32 v16, {WO_OFF}, v16")
    E("s_lshl_b32 s3, s2, 13"); E("v_lshlrev_b32 v22, 11, v3"); E("v_lshl_add_u32 v22, v4, 2, v22"); E("v_add_u32 v22, s3, v22")
    E("s_lshl_b32 s3, s20, 9"); E("v_add_u32 v22, s3, v22"); E(f"v_add_u32 v22, {WS_OPART}, v22"); E("v_add_u32 v23, 4096, v22")
    E("s_mov_b32 s52, 0"); L("K3_om")
    for nt in range(1):
        E(f"v_xor_b32 v11, s52, v9"); E("v_lshl_add_u32 v12, v11, 4, v16"); E("v_add_u32 v13, 0x10000, v12")
        E(f"v_xor_b32 v11, s52, v19"); E("v_lshl_add_u32 v18, v11, 4, v17")
        zero(range(48, 52))
        for ks in range(4):
            b = 12 + (ks >> 1); off = (ks & 1)*32768
            E(f"ds_read_b64_tr_b16 v[{160+4*ks}:{161+4*ks}], v{b} offset:{off}")
            E(f"ds_read_b64_tr_b16 v[{162+4*ks}:{163+4*ks}], v{b} offset:{off+4096}")
        E(f"v_add_u32 v18, {WD_OFF}, v18")
        E(f"ds_read_b64_tr_b16 v[176:177], v18"); E(f"ds_read_b64_tr_b16 v[178:179], v18 offset:4096")
        E("s_waitcnt lgkmcnt(0)")
        for ks in range(5):
            E(f"v_mfma_f32_16x16x32_bf16 v[48:51], v[{64+4*ks}:{67+4*ks}], v[{160+4*ks}:{163+4*ks}], v[48:51]")
        E("s_nop 7"); E("s_nop 1")
        E("v_cmp_gt_u32 vcc, 16, v1"); E("s_and_saveexec_b64 s[50:51], vcc")
        for j in range(4): E(f"buffer_store_dword v{48+j}, v22, s[44:47], 0 offen offset:{(j&1)*2048+nt*64}") if j<2 else E(f"buffer_store_dword v{48+j}, v23, s[44:47], 0 offen offset:{(j&1)*2048+nt*64}")
        E("s_mov_b64 exec, s[50:51]"); E("v_add_u32 v22, 64, v22"); E("v_add_u32 v23, 64, v23")
    E("s_add_u32 s52, s52, 2"); E("s_cmp_lt_u32 s52, 16"); E("s_cbranch_scc1 K3_om")
    L("K3_done")
    E("s_endpgm")

K4 = "k4_sum_kernel"
def gen_k4():
    head(K4)
    E("s_cmp_ge_u32 s2, 32"); E("s_cbranch_scc1 K4_done")
    E("s_load_dwordx2 s[4:5], s[0:1], 88"); E("s_load_dwordx2 s[14:15], s[0:1], 104")
    E("v_and_b32 v1, 63, v0"); E("v_lshrrev_b32 v2, 6, v0")
    E("s_waitcnt lgkmcnt(0)")
    srd(24, 4, 4096); srd(44, 14, WS_SIZE)
    E("s_lshl_b32 s3, s2, 6"); E("v_add_u32 v3, s3, v1"); E("v_lshlrev_b32 v4, 2, v3"); E("v_lshl_add_u32 v4, v2, 19, v4"); E(f"v_add_u32 v4, {WS_OPART}, v4")
    for u in range(64):
        E(f"buffer_load_dword v{16+u}, v4, s[44:47], 0 offen"); E("v_add_u32 v4, 0x2000, v4")
    E("s_waitcnt vmcnt(0)")
    for st in (32, 16, 8, 4, 2, 1):
        for u in range(st): E(f"v_add_f32 v{16+u}, v{16+u}, v{16+st+u}")
    E("v_lshlrev_b32 v5, 2, v0"); E("ds_write_b32 v5, v16"); E("s_waitcnt lgkmcnt(0)"); E("s_barrier")
    E("v_lshlrev_b32 v5, 2, v1")
    for w in range(4): E(f"ds_read_b32 v{8+w}, v5 offset:{256*w}")
    E("s_waitcnt lgkmcnt(0)"); E("v_add_f32 v8, v8, v9"); E("v_add_f32 v10, v10, v11"); E("v_add_f32 v8, v8, v10")
    E("v_cvt_pk_bf16_f32 v8, v8, v8"); E("v_lshlrev_b32 v3, 1, v3")
    E("v_cmp_gt_u32 vcc, 64, v0"); E("s_and_saveexec_b64 s[50:51], vcc")
    E("buffer_store_short v8, v3, s[24:27], 0 offen")
    L("K4_done"); E("s_endpgm")

hdr = f"""; generated by work/gen.py
; @launch kernel={K1} grid=(156,1,1) block=(256,1,1) lds=147456
; @launch kernel={K2} grid=(256,1,1) block=(256,1,1) lds={CK_OFF+131072+16384}
; @launch kernel={K3} grid=(256,1,1) block=(256,1,1) lds={WO_OFF+131072}
; @launch kernel={K4} grid=(32,1,1) block=(256,1,1) lds=1024
.amdgcn_target "amdgcn-amd-amdhsa--gfx950"
.text
"""
gen_k1(); gen_k2(); gen_k3(); gen_k4()
txt = hdr + "\n".join(out) + '\n.section .rodata,"a"\n.p2align 6\n'
for k, v in ((K1, 192), (K2, 192), (K3, 180), (K4, 80)):
    txt += ".p2align 6\n" + kd(k, v)
open(f"cdna_kernels/{NAME}.s", "w").write(txt)
```
